```python
import torch

def _softmax(x, axis=-1):
    return torch.softmax(x, dim=axis)
def _gelu(x):
    return torch.nn.functional.gelu(x, approximate="tanh")
def _silu(x):
    return torch.nn.functional.silu(x)
def _sigmoid(x):
    return torch.sigmoid(x)
def _layernorm(x, axis=-1, eps=1e-5):
    m = x.mean(dim=axis, keepdim=True)
    v = x.var(dim=axis, keepdim=True, unbiased=False)
    return (x - m) / torch.sqrt(v + eps)
def _scatter_add(tgt, idx, src, axis=0):
    return tgt.clone().index_add_(axis, idx, src)
def _segment_sum(src, seg, n):
    out = torch.zeros((n,) + src.shape[1:], dtype=src.dtype)
    return out.index_add_(0, seg, src)
def _pad(x, pw):
    flat = tuple(v for pair in reversed(pw) for v in pair)
    return torch.nn.functional.pad(x, flat)

kernel_name = 'parallel_sum__linear_kernel_hedgehog__dense_activation_relu__prompt'

def setup_inputs():

    _w = (lambda a: (lambda t: t.to(torch.bfloat16) if t.is_floating_point() else t)(torch.as_tensor(a)))
    def _A_setup():
        B, S, D, H = 1, 2048, 512, 32
        Dh = D // H
        return {
            "x": _w((lambda *s: torch.randn(*s, dtype=torch.bfloat16) * 0.05)(B, S, D)),
            "wqkv": _w((lambda *s: torch.randn(*s, dtype=torch.bfloat16) * 0.4)(D, 3 * D)),
            "w_phi": _w((lambda *s: torch.randn(*s, dtype=torch.bfloat16) * 0.4)(H, Dh, Dh) * (Dh ** -0.5)),
            "wo": _w((lambda *s: torch.randn(*s, dtype=torch.bfloat16) * 0.1)(D, D)),
        }
    _A_in = _A_setup()

    def _B_setup():
        B, S, D, Dff = 1, 2048, 512, 1792
        return {
            "x": _w((lambda *s: torch.randn(*s, dtype=torch.bfloat16) * 0.05)(B, S, D)),
            "w1": _w((lambda *s: torch.randn(*s, dtype=torch.bfloat16) * 0.05)(D, Dff)),
            "w2": _w((lambda *s: torch.randn(*s, dtype=torch.bfloat16) * 0.05)(Dff, D)),
        }
    _B_in = _B_setup()

    return {
        "A_x": _A_in["x"],
        "A_wqkv": _A_in["wqkv"],
        "A_w_phi": _A_in["w_phi"],
        "A_wo": _A_in["wo"],
        "B_x": _B_in["x"],
        "B_w1": _B_in["w1"],
        "B_w2": _B_in["w2"],
    }

def reference(A_x, A_wqkv, A_w_phi, A_wo, B_x, B_w1, B_w2):
    def _A_ref(x, wqkv, w_phi, wo):
        B, S, D = x.shape
        H = 32; Dh = D // H
        qkv = (lambda x, *d: x.permute(*d))((x @ wqkv).reshape(B, S, 3, H, Dh), 2, 0, 3, 1, 4)
        q, k, v = qkv[0], qkv[1], qkv[2]
        pq = torch.einsum("bhsd,hdf->bhsf", q, w_phi)
        pk = torch.einsum("bhsd,hdf->bhsf", k, w_phi)
        phi_q = torch.concatenate([_softmax(pq, axis=-1), _softmax(-pq, axis=-1)], axis=-1)
        phi_k = torch.concatenate([_softmax(pk, axis=-1), _softmax(-pk, axis=-1)], axis=-1)
        kv = torch.einsum("bhsf,bhsd->bhfd", phi_k, v)
        z  = torch.einsum("bhsf->bhf", phi_k)
        num = torch.einsum("bhqf,bhfd->bhqd", phi_q, kv)
        den = torch.einsum("bhqf,bhf->bhq", phi_q, z)[..., None] + 1e-6
        o = num / den
        return (lambda x, *d: x.permute(*d))(o, 0, 2, 1, 3).reshape(B, S, D) @ wo

    def _B_ref(x, w1, w2):
        h = torch.einsum("bsd,df->bsf", x, w1)
        zero = torch.zeros_like(h)
        h = torch.maximum(h, zero)
        return torch.einsum("bsf,fd->bsd", h, w2)

    x = A_x
    xn = _layernorm(x, axis=-1)
    return x + _A_ref(xn, A_wqkv, A_w_phi, A_wo) + _B_ref(xn, B_w1, B_w2)
```

```python
import re
NAME = "parallel_sum__linear_kernel_hedgehog__dense_activation_relu__prompt_kernel"

HEADER_COMMENT = """; Kernarg layout for this problem (80 bytes, ptrs only, base s[0:1]):
"""

_REG = re.compile(r"\b([vsa])(\d+)\b|\b([vsa])\[(\d+):(\d+)\]|\b(vcc|exec|m0|scc)\b")
TRANS = ("v_exp_f32", "v_log_f32", "v_rcp_f32", "v_rsq_f32", "v_sqrt_f32", "v_sin_f32", "v_cos_f32", "v_rcp_iflag_f32")

def regs_of(op):
    out = set()
    for m in _REG.finditer(op):
        if m.group(1):
            out.add((m.group(1), int(m.group(2))))
        elif m.group(3):
            for i in range(int(m.group(4)), int(m.group(5)) + 1):
                out.add((m.group(3), i))
        else:
            out.add((m.group(6), 0))
    return out

def split_ops(rest):
    ops, depth, cur = [], 0, ""
    for ch in rest:
        if ch == "[": depth += 1
        if ch == "]": depth -= 1
        if ch == "," and depth == 0:
            ops.append(cur.strip()); cur = ""
        else:
            cur += ch
    if cur.strip(): ops.append(cur.strip())
    return ops

class Ins:
    __slots__ = ("text", "mn", "kind", "dst", "src", "ws", "mf_a", "mf_b", "mf_c", "passes", "dpp", "wide_store", "lds_dma", "sdata")

def analyze(text):
    t = text.split(";")[0].strip()
    parts = t.split(None, 1)
    mn = parts[0]
    rest = parts[1] if len(parts) > 1 else ""
    ops = split_ops(rest)
    I = Ins(); I.text = text; I.mn = mn; I.dst = set(); I.src = set(); I.ws = 1
    I.mf_a = I.mf_b = I.mf_c = set(); I.passes = 0; I.dpp = False; I.wide_store = False; I.lds_dma = False; I.sdata = set()
    if mn == "s_nop":
        I.kind = "nop"; I.ws = int(ops[0], 0) + 1; return I
    if mn.startswith("v_mfma"):
        I.kind = "mfma"
        I.dst = regs_of(ops[0]); I.mf_a = regs_of(ops[1]); I.mf_b = regs_of(ops[2]); I.mf_c = regs_of(ops[3].split()[0])
        I.src = I.mf_a | I.mf_b | I.mf_c
        I.passes = 8 if "32x32" in mn else 4
        return I
    if mn.startswith("v_"):
        I.kind = "valu"
        I.dpp = ("row_" in rest) or ("quad_perm" in rest) or mn.endswith("_dpp")
        clean = [re.split(r"\s+(?=[a-z_]+:|row_|quad_perm|clamp|mul:|op_sel|neg_)", o)[0] for o in ops]
        if mn.startswith("v_permlane") and "swap" in mn:
            I.dst = regs_of(clean[0]) | regs_of(clean[1]); I.src = set(I.dst); return I
        if mn.startswith("v_cmp"):
            I.dst = regs_of(clean[0]); I.src = set().union(*[regs_of(o) for o in clean[1:]]); return I
        if mn.startswith(("v_add_co", "v_sub_co", "v_addc_co", "v_subb_co", "v_subrev_co")):
            I.dst = regs_of(clean[0]) | regs_of(clean[1]); I.src = set().union(*[regs_of(o) for o in clean[2:]]); return I
        I.dst = regs_of(clean[0])
        I.src = set().union(*[regs_of(o) for o in clean[1:]]) if len(clean) > 1 else set()
        if mn.startswith(("v_fmac", "v_dot2c", "v_pk_fmac")) or mn.startswith("v_writelane"):
            I.src |= I.dst
        if mn.startswith("v_cndmask") and len(clean) == 3:
            I.src.add(("vcc", 0))
        return I
    if mn.startswith("ds_"):
        I.kind = "ds"
        clean = [o.split()[0] for o in ops]
        mo = re.search(r"offset:(\d+)", rest)
        if mo: assert int(mo.group(1)) <= 65535, text
        if mn.startswith(("ds_read", "ds_bpermute", "ds_permute", "ds_swizzle")) or "_rtn" in mn:
            I.dst = regs_of(clean[0]); I.src = set().union(*[regs_of(o) for o in clean[1:]])
        else:
            I.src = set().union(*[regs_of(o) for o in clean])
        return I
    if mn.startswith(("buffer_", "global_", "flat_")):
        I.kind = "vmem"
        clean = [o.split()[0] for o in ops]
        words = rest.split()
        mo = re.search(r"offset:(\d+)", rest)
        if mo: assert int(mo.group(1)) <= 4095, text
        if mn in ("buffer_inv", "buffer_wbl2"):
            return I
        is_lds = ("lds" in words) or ("_lds_" in mn)
        if is_lds:
            I.lds_dma = True
            I.src = set().union(*[regs_of(o) for o in clean]) | {("m0", 0)}
        elif "_load" in mn:
            I.dst = regs_of(clean[0]); I.src = set().union(*[regs_of(o) for o in clean[1:]])
        elif "atomic" in mn and "sc0" in words:
            I.dst = regs_of(clean[0]); I.src = set().union(*[regs_of(o) for o in clean])
        else:
            I.src = set().union(*[regs_of(o) for o in clean])
            if mn.endswith(("x3", "x4")):
                I.wide_store = True
                I.sdata = regs_of(clean[0]) if mn.startswith("buffer_") else regs_of(clean[1])
        return I
    if mn.startswith("s_"):
        I.kind = "salu"
        if mn.startswith(("s_waitcnt", "s_barrier", "s_branch", "s_cbranch", "s_endpgm", "s_sleep", "s_setprio", "s_cmp", "s_bitcmp")):
            I.src = set().union(*[regs_of(o) for o in ops]) if mn.startswith(("s_cmp", "s_bitcmp")) else set()
            return I
        I.dst = regs_of(ops[0]) if ops else set()
        I.src = set().union(*[regs_of(o) for o in ops[1:]]) if len(ops) > 1 else set()
        if "saveexec" in mn:
            I.dst.add(("exec", 0))
        return I
    raise ValueError("unknown instruction: " + text)

def vg(S):
    return {r for r in S if r[0] in ("v", "a")}
def sg(S):
    return {r for r in S if r[0] in ("s", "vcc")}

def need(p, c):
    n = 0
    if p.kind == "valu":
        pv = vg(p.dst); ps = sg(p.dst)
        if pv:
            if c.kind == "mfma" and pv & c.src: n = max(n, 2)
            if c.kind == "valu":
                if c.mn.startswith("v_permlane") and pv & c.src: n = max(n, 2)
                if c.dpp and pv & c.src: n = max(n, 2)
                if c.mn.startswith(("v_readlane", "v_readfirstlane")) and pv & c.src: n = max(n, 1)
                if p.mn.startswith(TRANS) and not c.mn.startswith(TRANS) and pv & c.src: n = max(n, 1)
            if p.mn.startswith(TRANS) and c.kind in ("ds", "vmem") and pv & c.src: n = max(n, 1)
        if ps:
            if c.kind == "valu" and ps & c.src:
                n = max(n, 4 if c.mn.startswith(("v_readlane", "v_writelane")) else 2)
            if c.kind == "vmem" and ps & c.src: n = max(n, 5)
            if c.kind == "salu" and ps & c.src: n = max(n, 1)
    if p.kind == "mfma":
        big = p.passes == 8
        D = p.dst
        if c.kind == "mfma":
            if D & c.mf_c:
                if not (D == c.mf_c and c.passes == p.passes): n = max(n, 10 if big else 6)
            if D & (c.mf_a | c.mf_b): n = max(n, 12 if big else 8)
            if D & c.dst and not (D == c.dst and c.passes == p.passes): n = max(n, 10 if big else 6)
        elif c.kind in ("valu", "ds", "vmem"):
            if D & (c.src | c.dst): n = max(n, 12 if big else 8)
        if c.kind == "valu" and (p.mf_c & c.dst): n = max(n, 7 if big else 3)
    if p.kind == "vmem" and p.wide_store:
        if p.sdata & c.dst: n = max(n, 2 if c.kind in ("valu", "mfma") else 1)
    if p.kind == "salu" and ("m0", 0) in p.dst and c.kind == "vmem" and c.lds_dma: n = max(n, 1)
    return n

class Asm:
    def __init__(self, auto=True):
        self.lines = []
        self.hist = []
        self.nlabel = 0
        self.auto = auto
        self.nnops = 0
    def _emit(self, ln):
        I = analyze(ln)
        if self.auto and I.kind != "nop":
            dist = 0; req = 0
            for p in reversed(self.hist):
                if dist >= 12: break
                r = need(p, I) - dist
                if r > req: req = r
                dist += p.ws
            if req > 0:
                self.nnops += 1
                nop = analyze(f"s_nop {req-1}")
                self.lines.append(f"    s_nop {req-1}")
                self.hist.append(nop)
        self.lines.append("    " + ln)
        self.hist.append(I)
        if len(self.hist) > 40: self.hist = self.hist[-20:]
    def __call__(self, s):
        for ln in s.split("\n"):
            ln = ln.strip()
            if ln: self._emit(ln)
    def c(self, s):
        self.lines.append("    ; " + s)
    def label(self, pfx="L"):
        self.nlabel += 1
        return f"{pfx}_{self.nlabel}"
    def place(self, name):
        self.lines.append(name + ":")
    def settle(self, n=12):
        dist = 0; worst = 0
        for p in reversed(self.hist):
            if dist >= 12: break
            w = 0
            if p.kind == "mfma": w = 12 if p.passes == 8 else 8
            elif p.kind == "valu": w = 5 if sg(p.dst) else 2
            elif p.kind == "vmem" and p.wide_store: w = 2
            elif p.kind == "salu" and ("m0", 0) in p.dst: w = 1
            worst = max(worst, w - dist)
            dist += p.ws
        if worst > 0:
            self(f"s_nop {worst-1}")
    def forget(self):
        self.hist = []
    def text(self):
        return "\n".join(self.lines) + "\n"

def kernel_wrap(kernels, launches):
    out = HEADER_COMMENT
    single = len(launches) == 1 and launches[0][0] == NAME
    for (lab, g, b, lds) in launches:
        if single:
            out += f"; @launch grid=({g},1,1) block=({b},1,1) lds={lds}\n"
        else:
            out += f"; @launch kernel={lab} grid=({g},1,1) block=({b},1,1) lds={lds}\n"
    out += '.amdgcn_target "amdgcn-amd-amdhsa--gfx950"\n.text\n'
    for (lab, body, nv, ns) in kernels:
        out += f".globl {lab}\n.p2align 8\n.type {lab},@function\n{lab}:\n{body}"
    out += '.section .rodata,"a"\n'
    for (lab, body, nv, ns) in kernels:
        acc = (nv + 3) // 4 * 4
        out += f""".p2align 6
.amdhsa_kernel {lab}
  .amdhsa_next_free_vgpr {nv}
  .amdhsa_next_free_sgpr {ns}
  .amdhsa_accum_offset {acc}
  .amdhsa_group_segment_fixed_size 0
  .amdhsa_kernarg_size 80
  .amdhsa_user_sgpr_count 2
  .amdhsa_user_sgpr_kernarg_segment_ptr 1
  .amdhsa_system_sgpr_workgroup_id_x 1
.end_amdhsa_kernel
"""
    return out
```

```python
import sys
from asmlib import *

A2_OFF = 0
PHIQ_OFF = 0xA00000
KV_OFF = 0xE00000
STATS_OFF = 0xE40000
CSUM_OFF = 0xE50000
EPOCH_OFF = 0xFF0000
DUMMY_OFF = 0xF00000
STAMP_OFF = 0x4000000
WS_SIZE = 0x8000000

XSLOT = 16384
WBASE = 49152
WSLOT_B = 28672
WSLOT_A = 16384
SC = 135168
CS_STAGE = SC
ROWP = SC + 14336
RSTD = ROWP + 1024
COLP = RSTD + 512
ZERO8 = COLP + 1792
ONES = ZERO8 + 16
WPHI = ONES + 16 + 32
assert WPHI % 16 == 0 and WPHI + 4096 <= 163840
KFR = 98304
VT = KFR + 16384
VRS = 136
PHT = VT + 17408
PRS = 72
assert PHT == 132096
PHT = CS_STAGE
LOG2E = 0x3fb8aa3b

STAMPS = False

def srd(a, d, p, n):
    a(f"s_mov_b32 s{d}, s{p}")
    a(f"s_and_b32 s{d+1}, s{p+1}, 0xffff")
    a(f"s_mov_b32 s{d+2}, {n}")
    a(f"s_mov_b32 s{d+3}, 0x00020000")

def prologue(a, ngrid=256):
    a(f"s_cmp_ge_u32 s2, {ngrid}")
    a("s_cbranch_scc1 L_end_" + a.kname)
    a("s_load_dwordx4 s[44:47], s[0:1], 0")
    a("s_load_dwordx4 s[48:51], s[0:1], 16")
    a("s_load_dwordx4 s[52:55], s[0:1], 40")
    a("s_load_dwordx2 s[56:57], s[0:1], 56")
    a("s_load_dwordx2 s[58:59], s[0:1], 72")
    if STAMPS: a("s_memrealtime s[60:61]")
    a("v_lshrrev_b32 v1, 6, v0")
    a("v_and_b32 v0, 63, v0")
    a("v_readfirstlane_b32 s38, v1")
    a("s_and_b32 s3, s2, 7")
    a("s_lshr_b32 s42, s2, 3")
    a("s_lshr_b32 s36, s3, 2")
    a("s_lshl_b32 s36, s36, 3")
    a("s_and_b32 s37, s42, 7")
    a("s_add_u32 s36, s36, s37")
    a("s_and_b32 s37, s3, 3")
    a("s_lshl_b32 s37, s37, 2")
    a("s_lshr_b32 s43, s42, 3")
    a("s_add_u32 s37, s37, s43")
    a("s_lshr_b32 s40, s37, 1")
    a("s_and_b32 s41, s37, 1")
    a("s_waitcnt lgkmcnt(0)")
    a(f"s_add_u32 s62, s58, {EPOCH_OFF}")
    a("s_addc_u32 s63, s59, 0")
    a("s_load_dword s39, s[62:63], 0")
    srd(a, 4, 44, 2097152)
    srd(a, 8, 46, 1572864)
    srd(a, 12, 52, 1835008)
    srd(a, 16, 54, 1835008)
    srd(a, 20, 50, 524288)
    srd(a, 24, 56, 2097152)
    srd(a, 28, 58, WS_SIZE)
    srd(a, 32, 48, 16384)
    a("s_waitcnt lgkmcnt(0)")
    a("s_mul_i32 s39, s39, 0x9E3779B1")
    a("s_add_u32 s39, s39, 0x7F4A7C15")

def stamp(a, idx, nst=16, tmp=(250, 251, 252), spair=None):
    if not STAMPS: return
    if spair is None:
        spair = 62
        a(f"s_memrealtime s[62:63]")
        a("s_waitcnt lgkmcnt(0)")
    a(f"v_mov_b32 v{tmp[0]}, s{spair}")
    a(f"v_mov_b32 v{tmp[1]}, s{spair+1}")
    a(f"s_mul_i32 s66, s2, {nst*8}")
    a(f"s_add_u32 s66, s66, {STAMP_OFF + idx*8}")
    a(f"v_mov_b32 v{tmp[2]}, s66")
    a("s_mov_b64 s[64:65], exec")
    a("s_mov_b64 exec, 1")
    a(f"buffer_store_dwordx2 v[{tmp[0]}:{tmp[1]}], v{tmp[2]}, s[28:31], 0 offen")
    a("s_mov_b64 exec, s[64:65]")
    if hasattr(a, "vm"): a.vm.append("stamp")

class VM:
    def __init__(self, a): self.a = a; self.q = []; a.vm = self
    def append(self, tag): self.q.append(tag)
    def issue(self, ins, tag): self.a(ins); self.q.append(tag)
    def wait(self, *tags):
        idx = max((k for k, t in enumerate(self.q) if t in tags), default=-1)
        if idx < 0: return
        n = len(self.q) - 1 - idx
        assert n <= 63
        self.a(f"s_waitcnt vmcnt({n})")
        self.q = self.q[idx+1:]
    def waitall(self):
        self.a("s_waitcnt vmcnt(0)"); self.q = []

def xreduce64(a, regs, tmp, op="v_add_f32"):
    for pat in ("quad_perm:[1,0,3,2]", "quad_perm:[2,3,0,1]", "row_half_mirror", "row_mirror"):
        for r in regs:
            a(f"{op}_dpp v{r}, v{r}, v{r} {pat} row_mask:0xf bank_mask:0xf")
    for sw in ("v_permlane16_swap_b32", "v_permlane32_swap_b32"):
        for r, t in zip(regs, tmp):
            a(f"v_mov_b32 v{t}, v{r}")
        for r, t in zip(regs, tmp):
            a(f"{sw} v{r}, v{t}")
        for r, t in zip(regs, tmp):
            a(f"{op} v{r}, v{r}, v{t}")

def softmax_unit(a, P, cs, T, OUT):
    p = [P + k for k in range(8)]
    mx, mn, t0, t1 = T, T + 1, T + 2, T + 3
    E = T + 4
    a(f"v_max3_f32 v{mx}, v{p[0]}, v{p[1]}, v{p[2]}")
    a(f"v_min3_f32 v{mn}, v{p[0]}, v{p[1]}, v{p[2]}")
    a(f"v_max3_f32 v{t0}, v{p[3]}, v{p[4]}, v{p[5]}")
    a(f"v_min3_f32 v{t1}, v{p[3]}, v{p[4]}, v{p[5]}")
    a(f"v_max3_f32 v{mx}, v{mx}, v{p[6]}, v{p[7]}")
    a(f"v_min3_f32 v{mn}, v{mn}, v{p[6]}, v{p[7]}")
    a(f"v_max_f32 v{mx}, v{mx}, v{t0}")
    a(f"v_min_f32 v{mn}, v{mn}, v{t1}")
    a(f"v_sub_f32 v{mn}, 0, v{mn}")
    a(f"v_permlane32_swap_b32 v{mx}, v{mn}")
    a(f"v_max_f32 v{mx}, v{mx}, v{mn}")
    a(f"v_mul_f32 v{mx}, v{mx}, v{cs}")
    a(f"v_mov_b32 v{mn}, v{mx}")
    a(f"v_permlane32_swap_b32 v{mx}, v{mn}")
    for k in range(8):
        a(f"v_fma_f32 v{E+k}, v{p[k]}, v{cs}, -v{mx}")
        a(f"v_fma_f32 v{E+8+k}, -v{p[k]}, v{cs}, -v{mn}")
    for k in range(16):
        a(f"v_exp_f32 v{E+k}, v{E+k}")
    for half, d in ((0, mx), (8, mn)):
        a(f"v_add_f32 v{d}, v{E+half}, v{E+half+1}")
        a(f"v_add_f32 v{t0}, v{E+half+2}, v{E+half+3}")
        a(f"v_add_f32 v{t1}, v{E+half+4}, v{E+half+5}")
        a(f"v_add_f32 v{d}, v{d}, v{t0}")
        a(f"v_add_f32 v{t0}, v{E+half+6}, v{E+half+7}")
        a(f"v_add_f32 v{d}, v{d}, v{t1}")
        a(f"v_add_f32 v{d}, v{d}, v{t0}")
    a(f"v_permlane32_swap_b32 v{mx}, v{mn}")
    a(f"v_add_f32 v{mx}, v{mx}, v{mn}")
    a(f"v_rcp_f32 v{mx}, v{mx}")
    a(f"v_mov_b32 v{mn}, v{mx}")
    a(f"v_permlane32_swap_b32 v{mx}, v{mn}")
    for k in range(8):
        a(f"v_mul_f32 v{E+k}, v{E+k}, v{mx}")
        a(f"v_mul_f32 v{E+8+k}, v{E+8+k}, v{mn}")
    for k in range(8):
        a(f"v_cvt_pk_bf16_f32 v{OUT+k}, v{E+2*k}, v{E+2*k+1}")

def mfma_wave_addrs(a, XA, WA, ntile_own_stride_s, extra=None):
    a("s_lshr_b32 s70, s38, 1")
    a("s_and_b32 s71, s38, 1")
    a("v_and_b32 v2, 31, v0")
    a("v_lshrrev_b32 v3, 5, v0")
    a("v_lshrrev_b32 v4, 1, v2")
    a("v_and_b32 v4, 7, v4")
    a("s_lshl_b32 s72, s38, 12")
    a("v_lshlrev_b32 v5, 7, v2")
    a("v_add_u32 v5, s72, v5")
    for st in range(4):
        a(f"v_add_u32 v6, {2*st}, v3")
        a("v_xor_b32 v6, v6, v4")
        a(f"v_lshl_add_u32 v{XA+st}, v6, 4, v5")
        a(f"v_xor_b32 v{XA+4+st}, 0x1000, v{XA+st}")
    a("v_lshrrev_b32 v6, 2, v0")
    a("v_and_b32 v6, 3, v6")
    a("v_lshl_add_u32 v6, v3, 3, v6")
    a("v_lshlrev_b32 v6, 6, v6")
    a("v_lshrrev_b32 v7, 4, v0")
    a("v_and_b32 v7, 1, v7")
    a("v_lshl_add_u32 v6, v7, 5, v6")
    a("v_and_b32 v7, 3, v0")
    a("v_lshl_add_u32 v6, v7, 3, v6")
    a(f"s_mul_i32 s72, s71, {ntile_own_stride_s}")
    a(f"s_add_u32 s72, s72, {WBASE}")
    a(f"v_add_u32 v{WA}, s72, v6")
    if extra is not None:
        a(f"v_add_u32 v{WA+1}, {WBASE + extra}, v6")

def gemm_loop(a, name, nstage, F, XA, WA, ACC, wtiles, order, wslot, first_waits=None):
    nM = len(order)
    def reads(fs, st):
        b = F[fs]
        L = []
        need_seq = []
        seen = set()
        for (x, w) in order:
            for item in (("x", x), ("w", w)):
                if item not in seen:
                    seen.add(item); need_seq.append(item)
        for (k, n) in need_seq:
            if k == "x":
                L.append((("x", n), f"ds_read_b128 v[{b+4*n}:{b+4*n+3}], v{XA+4*n+st}"))
            else:
                ar, off = wtiles[n]
                for z in range(2):
                    L.append((("w", n), f"ds_read_b64_tr_b16 v[{b+8+4*n+2*z}:{b+9+4*n+2*z}], v{ar} offset:{off + st*1024 + z*256}"))
        return L
    def mf(fs, n):
        b = F[fs]; x, w = order[n]; acc = ACC + 16 * n
        return f"v_mfma_f32_32x32x16_bf16 v[{acc}:{acc+15}], v[{b+8+4*w}:{b+11+4*w}], v[{b+4*x}:{b+4*x+3}], v[{acc}:{acc+15}]"
    R0 = reads(0, 0)
    nR = len(R0)
    tags = [t for t, _ in R0]
    def last_idx(x, w):
        return max(k for k, t in enumerate(tags) if t in (("x", x), ("w", w)))
    ngaps = max(1, nM - 2) if nM > 2 else nM
    per = -(-nR // ngaps)
    a(f"s_mov_b32 s73, 0")
    for _, ins in R0: a(ins)
    a.place(f"L_{name}_loop")
    for st in range(3):
        R = reads((st + 1) % 2, st + 1)
        issued = 0; done = -1
        for n in range(nM):
            li = last_idx(*order[n])
            if li > done:
                a(f"s_waitcnt lgkmcnt({min(15, nR - 1 - li + issued)})")
                done = li
            a(mf(st % 2, n))
            for _, ins in R[issued:issued + per]:
                a(ins)
            issued = min(nR, issued + per)
        assert issued == nR
    npre = min(2, nM - 1)
    adv = [f"v_add_u32 v{XA+r}, s75, v{XA+r}" for r in range(8)] + [f"v_add_u32 v{ar}, s76, v{ar}" for ar in sorted({ar for ar, _ in wtiles})]
    done = -1
    a("s_add_u32 s74, s74, 1")
    a("s_cmp_eq_u32 s74, 3")
    a("s_cselect_b32 s76, -2, 1")
    a("s_cselect_b32 s74, 0, s74")
    a("s_lshl_b32 s75, s76, 14")
    a(f"s_mul_i32 s76, s76, {wslot}")
    k = 0
    for n in range(npre):
        li = last_idx(*order[n])
        if li > done:
            a(f"s_waitcnt lgkmcnt({nR - 1 - li})")
            done = li
        a(mf(1, n))
        cnt = -(-len(adv) // npre)
        for ins in adv[k:k + cnt]: a(ins)
        k += cnt
    a("s_waitcnt lgkmcnt(0)")
    a("s_barrier")
    a("s_add_u32 s73, s73, 1")
    a(f"s_cmp_eq_u32 s73, {nstage}")
    a(f"s_cbranch_scc1 L_{name}_tail")
    rem = nM - npre
    per2 = -(-nR // rem)
    issued = 0
    for n in range(npre, nM):
        a(mf(1, n))
        for _, ins in R0[issued:issued + per2]: a(ins)
        issued = min(nR, issued + per2)
    a(f"s_branch L_{name}_loop")
    a.place(f"L_{name}_tail")
    for n in range(npre, nM):
        a(mf(1, n))

def correction(a, ACC, order, ctile_of_w, T):
    nW = len(ctile_of_w)
    RW, CW, AD = T, T + 4, T + 4 + 2 * nW
    a(f"v_and_b32 v{AD}, 31, v0")
    a(f"v_lshlrev_b32 v{AD}, 3, v{AD}")
    a("s_lshl_b32 s72, s38, 8")
    a(f"s_add_u32 s72, s72, {ROWP}")
    a(f"v_add_u32 v{AD+1}, s72, v{AD}")
    a("s_xor_b32 s77, s38, 1")
    a("s_lshl_b32 s77, s77, 8")
    a(f"s_add_u32 s77, s77, {ROWP}")
    a(f"v_add_u32 v{AD+2}, s77, v{AD}")
    a(f"ds_read_b64 v[{RW}:{RW+1}], v{AD+1}")
    a(f"ds_read_b64 v[{RW+2}:{RW+3}], v{AD+2}")
    a("v_cmp_gt_u32 vcc, 32, v0")
    for w, (sreg, const) in enumerate(ctile_of_w):
        if sreg is not None:
            a(f"s_add_u32 s72, s{sreg}, {COLP + const}")
            a(f"v_add_u32 v{AD+1}, s72, v{AD}")
        else:
            a(f"v_add_u32 v{AD+1}, {COLP + const}, v{AD}")
        a(f"v_mov_b32 v{AD+2}, {ZERO8}")
        a(f"v_cndmask_b32 v{AD+1}, v{AD+2}, v{AD+1}, vcc")
        a(f"ds_read_b64 v[{CW+2*w}:{CW+2*w+1}], v{AD+1}")
    a("s_waitcnt lgkmcnt(0)")
    for n, (x, w) in enumerate(order):
        acc = ACC + 16 * n
        a(f"v_mfma_f32_32x32x8bf16_1k v[{acc}:{acc+15}], v[{CW+2*w}:{CW+2*w+1}], v[{RW+2*x}:{RW+2*x+1}], v[{acc}:{acc+15}]")

def gen_k1():
    a = Asm(); a.kname = "k1"
    prologue(a)
    a("s_cmp_ge_u32 s38, 4")
    a("s_cbranch_scc1 L_helper")
    a("s_cmp_eq_u32 s41, 1")
    a("s_cbranch_scc1 L_mfmaA")
    ACC = 112; F = [16, 40]; XA = 64; WA = 72
    mfma_wave_addrs(a, XA, WA, 12288, extra=6 * 4096)
    for r in range(112): a(f"v_mov_b32 v{ACC+r}, 0")
    a("s_mov_b32 s74, 0")
    a("s_barrier")
    stamp(a, 1)
    orderB = [(0, 0), (1, 0), (0, 1), (1, 1), (0, 2), (1, 2), (0, 3)]
    gemm_loop(a, "B", 8, F, XA, WA, ACC, [(WA, 0), (WA, 4096), (WA, 8192), (WA + 1, 0)], orderB, WSLOT_B)
    stamp(a, 2)
    a("s_mul_i32 s78, s71, 768")
    correction(a, ACC, orderB, [(78, 0), (78, 256), (78, 512), (None, 1536)], 16)
    a("v_lshlrev_b32 v2, 4, v0")
    a("s_mul_i32 s77, s40, 18")
    a("s_lshl_b32 s78, s36, 2")
    a("s_add_u32 s78, s78, s38")
    a("s_xor_b32 s79, s78, 1")
    a("s_mul_i32 s78, s78, 144")
    a("s_mul_i32 s79, s79, 144")
    a("s_mul_i32 s80, s71, 6")
    a("s_add_u32 s78, s78, s77")
    a("s_add_u32 s79, s79, s77")
    a("s_add_u32 s81, s78, 12")
    a("s_add_u32 s78, s78, s80")
    a("s_add_u32 s79, s79, s80")
    a("s_lshl_b32 s78, s78, 10")
    a("s_lshl_b32 s79, s79, 10")
    a("s_lshl_b32 s81, s81, 10")
    a("v_add_u32 v3, 4096, v2")
    for n, (x, w) in enumerate(orderB):
        acc = ACC + 16 * n
        t = 40 + 8 * (n % 3)
        for p in range(8): a(f"v_cvt_pk_bf16_f32 v{t+p}, v{acc+2*p}, v{acc+2*p+1}")
        for p in range(8): a(f"v_pk_max_i16 v{t+p}, v{t+p}, 0")
        sb = 81 if w == 3 else (78 if x == 0 else 79)
        off = 0 if w >= 2 else w * 2048
        va = 3 if w == 2 else 2
        a(f"buffer_store_dwordx4 v[{t}:{t+3}], v{va}, s[28:31], s{sb} offen offset:{off} sc1")
        a(f"buffer_store_dwordx4 v[{t+4}:{t+7}], v{va}, s[28:31], s{sb} offen offset:{off+1024} sc1")
    stamp(a, 3)
    if STAMPS:
        a("s_waitcnt vmcnt(0)")
        stamp(a, 4)
    a("s_branch L_end_k1")
    a.place("L_mfmaA"); a.forget()
    ACC = 112; F = [16, 32]; XA = 64; WA = 72
    mfma_wave_addrs(a, XA, WA, 4096)
    for r in range(64): a(f"v_mov_b32 v{ACC+r}, 0")
    a("s_mov_b32 s74, 0")
    a("s_barrier")
    stamp(a, 1)
    orderA = [(0, 0), (1, 0), (0, 1), (1, 1)]
    gemm_loop(a, "A1", 8, F, XA, WA, ACC, [(WA, 0), (WA, 8192)], orderA, WSLOT_A)
    stamp(a, 2)
    a("s_lshl_b32 s78, s71, 8")
    correction(a, ACC, orderA, [(78, 0), (78, 512)], 16)
    a("v_and_b32 v2, 31, v0")
    a("v_lshlrev_b32 v3, 2, v2")
    a("s_lshl_b32 s72, s38, 7")
    a(f"s_add_u32 s72, s72, {RSTD}")
    a("v_add_u32 v4, s72, v3")
    a("s_xor_b32 s77, s38, 1")
    a("s_lshl_b32 s77, s77, 7")
    a(f"s_add_u32 s77, s77, {RSTD}")
    a("v_add_u32 v5, s77, v3")
    a("ds_read_b32 v8, v4")
    a("ds_read_b32 v9, v5")
    a("v_lshlrev_b32 v3, 4, v0")
    a("s_lshl_b32 s72, s38, 12")
    a("s_lshl_b32 s77, s71, 11")
    a("s_add_u32 s72, s72, s77")
    a(f"s_add_u32 s72, s72, {KFR}")
    a("v_add_u32 v4, s72, v3")
    a("v_xor_b32 v5, 0x1000, v4")
    assert KFR % 8192 == 0
    for x in range(2):
        acc = ACC + 16 * x
        t = 40 + 8 * x
        for p in range(8): a(f"v_cvt_pk_bf16_f32 v{t+p}, v{acc+2*p}, v{acc+2*p+1}")
        a(f"ds_write_b128 v{4+x}, v[{t}:{t+3}]")
        a(f"ds_write_b128 v{4+x}, v[{t+4}:{t+7}] offset:1024")
    a("v_lshrrev_b32 v3, 5, v0")
    a("v_lshlrev_b32 v3, 3, v3")
    a(f"v_mul_u32_u24 v6, {VRS}, v2")
    a("v_add_u32 v3, v3, v6")
    a(f"s_mul_i32 s72, s38, {32*VRS}")
    a("s_lshl_b32 s77, s71, 6")
    a("s_add_u32 s72, s72, s77")
    a(f"s_add_u32 s72, s72, {VT}")
    a("v_add_u32 v4, s72, v3")
    a("s_xor_b32 s79, s38, 1")
    a(f"s_mul_i32 s72, s79, {32*VRS}")
    a("s_add_u32 s72, s72, s77")
    a(f"s_add_u32 s72, s72, {VT}")
    a("v_add_u32 v5, s72, v3")
    a("s_waitcnt lgkmcnt(0)")
    for x in range(2):
        acc = ACC + 32 + 16 * x
        t = 40 + 8 * x
        for p in range(16): a(f"v_mul_f32 v{acc+p}, v{acc+p}, v{8+x}")
        for p in range(8): a(f"v_cvt_pk_bf16_f32 v{t+p}, v{acc+2*p}, v{acc+2*p+1}")
        for q in range(4): a(f"ds_write_b64 v{4+x}, v[{t+2*q}:{t+2*q+1}] offset:{16*q}")
    for r in range(32): a(f"v_mov_b32 v{ACC+r}, 0")
    orderQ = [(0, 0), (1, 0)]
    gemm_loop(a, "A2", 8, F, XA, WA, ACC, [(WA, 0)], orderQ, WSLOT_A)
    stamp(a, 3)
    correction(a, ACC, orderQ, [(78, 1024)], 16)
    a("v_lshrrev_b32 v3, 5, v0")
    a("v_lshrrev_b32 v4, 2, v0")
    a("v_and_b32 v4, 3, v4")
    a("v_lshl_add_u32 v4, v3, 2, v4")
    a("v_lshlrev_b32 v4, 5, v4")
    a("v_and_b32 v5, 3, v0")
    a("v_lshl_add_u32 v4, v5, 3, v4")
    a("s_lshl_b32 s72, s71, 11")
    a(f"s_add_u32 s72, s72, {WPHI}")
    a("v_add_u32 v4, s72, v4")
    WF = 24
    for hh in range(2):
        for z in range(2):
            a(f"ds_read_b64_tr_b16 v[{WF+4*hh+2*z}:{WF+4*hh+2*z+1}], v4 offset:{hh*1024 + z*256}")
    a(f"s_mov_b32 s77, {LOG2E}")
    a("v_mul_f32 v8, s77, v8")
    a("v_mul_f32 v9, s77, v9")
    QF = 32
    for x in range(2):
        acc = ACC + 16 * x
        for p in range(8): a(f"v_cvt_pk_bf16_f32 v{QF+8*x+p}, v{acc+2*p}, v{acc+2*p+1}")
    a("s_waitcnt lgkmcnt(0)")
    PD = 144
    for x in range(2):
        for hh in range(2):
            d = PD + 16 * (2 * x + hh)
            a(f"v_mfma_f32_32x32x16_bf16 v[{d}:{d+15}], v[{WF+4*hh}:{WF+4*hh+3}], v[{QF+8*x+4*hh}:{QF+8*x+4*hh+3}], 0")
    a("v_lshlrev_b32 v2, 4, v0")
    a("s_lshl_b32 s78, s36, 2")
    a("s_add_u32 s78, s78, s38")
    a("s_xor_b32 s79, s78, 1")
    a("s_lshl_b32 s80, s40, 2")
    a("s_lshl_b32 s81, s71, 1")
    a("s_add_u32 s80, s80, s81")
    for sr in (78, 79):
        a(f"s_lshl_b32 s{sr}, s{sr}, 5")
        a(f"s_add_u32 s{sr}, s{sr}, s80")
        a(f"s_lshl_b32 s{sr}, s{sr}, 11")
        a(f"s_add_u32 s{sr}, s{sr}, {PHIQ_OFF}")
    for x in range(2):
        for hh in range(2):
            d = PD + 16 * (2 * x + hh)
            o = 48 + 8 * ((2 * x + hh) % 2)
            softmax_unit(a, d, 8 + x, 80, o)
            a(f"buffer_store_dwordx4 v[{o}:{o+3}], v2, s[28:31], s{78+x} offen offset:{hh*2048} sc1")
            a(f"buffer_store_dwordx4 v[{o+4}:{o+7}], v2, s[28:31], s{78+x} offen offset:{hh*2048+1024} sc1")
    stamp(a, 4)
    a("s_branch L_end_k1")
    a.place("L_helper"); a.forget()
    a("s_sub_u32 s70, s38, 4")
    if STAMPS: stamp(a, 0, spair=60)
    VX = 8; VW = 12; VC = 13
    a("v_lshrrev_b32 v2, 3, v0")
    a("v_lshlrev_b32 v2, 10, v2")
    a("s_lshl_b32 s71, s36, 7")
    a("s_lshl_b32 s72, s70, 5")
    a("s_add_u32 s71, s71, s72")
    a("s_lshl_b32 s71, s71, 10")
    a("v_add_u32 v2, s71, v2")
    a("v_lshrrev_b32 v3, 4, v0")
    a("v_and_b32 v4, 7, v0")
    for tp in range(4):
        a(f"v_add_u32 v5, {4*tp}, v3")
        a("v_and_b32 v5, 7, v5")
        a("v_xor_b32 v5, v5, v4")
        a(f"v_lshl_add_u32 v{VX+tp}, v5, 4, v2")
        if tp: a(f"v_add_u32 v{VX+tp}, {tp*7168}, v{VX+tp}")
    a("s_cmp_eq_u32 s41, 1")
    a("s_cbranch_scc1 L_helperA")
    for typ in ("B", "A"):
        if typ == "A":
            a.place("L_helperA"); a.forget()
        vm = VM(a)
        WS = "s[12:15]" if typ == "B" else "s[8:11]"
        stride = 3584 if typ == "B" else 3072
        wslot = WSLOT_B if typ == "B" else WSLOT_A
        colb = (448 if typ == "B" else 128)
        tiles_all = [64 * c for c in range(7)] if typ == "B" else [1024, 1088, 2048, 2112, 0, 64]
        a(f"s_mul_i32 s74, s40, {colb}")
        a("v_lshrrev_b32 v2, 2, v0")
        a(f"v_mul_u32_u24 v2, {stride}, v2")
        a("v_and_b32 v3, 3, v0")
        a("v_lshl_add_u32 v2, v3, 4, v2")
        a(f"v_add_u32 v{VC}, s74, v2")
        a(f"s_mul_i32 s75, s70, {16*stride}")
        a(f"v_add_u32 v{VW}, s75, v{VC}")
        a("s_lshl_b32 s78, s70, 12")
        a("s_lshl_b32 s79, s70, 10")
        a(f"s_add_u32 s79, s79, {WBASE}")
        nst = 8 if typ == "B" else 16
        def issue(s):
            slot = s % 3
            ks = s % 8
            tl = tiles_all if typ == "B" else (tiles_all[:4] if s < 8 else tiles_all[4:])
            a(f"s_add_u32 m0, s78, {slot*XSLOT}")
            a(f"s_movk_i32 s76, {ks*128}")
            for tp in range(4):
                vm.issue(f"buffer_load_dwordx4 v{VX+tp}, s[4:7], s76 offen offset:{tp*1024} lds", f"st{s}")
            a(f"s_mov_b32 s77, {ks*64*stride}")
            for c, off in enumerate(tl):
                a(f"s_add_u32 m0, s79, {slot*wslot + c*4096 - off}")
                vm.issue(f"buffer_load_dwordx4 v{VW}, {WS}, s77 offen offset:{off} lds", f"st{s}")
        issue(0)
        a("v_lshlrev_b32 v14, 4, v0")
        if typ == "A":
            a("s_lshl_b32 s72, s40, 14")
            a("s_lshl_b32 s73, s36, 10")
            a("s_add_u32 s72, s72, s73")
            a("s_lshl_b32 s73, s70, 8")
            a("s_add_u32 s72, s72, s73")
            a(f"s_add_u32 s72, s72, {KV_OFF}")
            a("v_lshlrev_b32 v15, 2, v0")
            a("v_mov_b32 v16, 0")
            vm.issue("buffer_store_dword v16, v15, s[28:31], s72 offen sc1", "zero")
            a("s_lshl_b32 s72, s40, 11")
            a("s_lshl_b32 s73, s70, 9")
            a("s_add_u32 s72, s72, s73")
            a("s_lshl_b32 s73, s70, 10")
            a(f"s_add_u32 m0, s73, {WPHI}")
            vm.issue("buffer_load_dwordx4 v14, s[32:35], s72 offen lds", "wphi")
        a("s_lshl_b32 s72, s36, 7")
        a("s_lshl_b32 s73, s37, 3")
        a("s_add_u32 s72, s72, s73")
        a("s_lshl_b32 s73, s70, 1")
        a("s_add_u32 s80, s72, s73")
        a("s_lshl_b32 s72, s80, 10")
        vm.issue("buffer_load_dwordx4 v[20:23], v14, s[4:7], s72 offen", "rows")
        vm.issue("buffer_load_dwordx4 v[24:27], v14, s[4:7], s72 offen offset:1024", "rows")
        a(f"s_mul_i32 s81, s36, {32*stride}")
        nt = len(tiles_all)
        def tile_off_sel(dst, idx_s, table):
            a(f"s_mov_b32 s{dst}, {table[0]}")
            for k in range(1, len(table)):
                a(f"s_cmp_eq_u32 s{idx_s}, {k}")
                a(f"s_cselect_b32 s{dst}, {table[k]}, s{dst}")
        tile_off_sel(82, 70, tiles_all[:4])
        t2 = tiles_all[4:] + [tiles_all[0]] * (8 - nt)
        tile_off_sel(83, 70, t2)
        for tt, so in ((0, 82), (1, 83)):
            for kb in range(2):
                a(f"s_add_u32 s72, s81, s{so}")
                if kb: a(f"s_add_u32 s72, s72, {16*stride}")
                a("s_lshl_b32 s73, s70, 11")
                a(f"s_add_u32 m0, s73, {CS_STAGE + tt*8192 + kb*1024}")
                if tt == 1 and nt < 8:
                    pass
                vm.issue(f"buffer_load_dwordx4 v{VC}, {WS}, s72 offen lds", "cs")
        issue(1)
        issue(2)
        a(f"v_mov_b32 v16, {ZERO8}")
        a("v_mov_b32 v28, 0\nv_mov_b32 v29, 0\nv_mov_b32 v30, 0x3f803f80\nv_mov_b32 v31, 0x3f803f80")
        a("ds_write_b64 v16, v[28:29]")
        a("ds_write_b64 v16, v[30:31] offset:16")
        a("ds_write_b64 v16, v[30:31] offset:24")
        vm.wait("st0", "cs")
        a("s_barrier")
        U = 32
        for rr in range(2):
            for k in range(4):
                a(f"v_lshlrev_b32 v{U+8*rr+2*k}, 16, v{20+4*rr+k}")
                a(f"v_and_b32 v{U+8*rr+2*k+1}, 0xffff0000, v{20+4*rr+k}")
        for rr in range(2):
            b = U + 8 * rr; d = 48 + rr
            a(f"v_add_f32 v{d}, v{b}, v{b+1}")
            for k in range(2, 8): a(f"v_add_f32 v{d}, v{d}, v{b+k}")
        xreduce64(a, [48, 49], [50, 51])
        a("v_mul_f32 v48, 0x3b000000, v48")
        a("v_mul_f32 v49, 0x3b000000, v49")
        for rr in range(2):
            b = U + 8 * rr; d = 52 + rr
            for k in range(8): a(f"v_sub_f32 v{b+k}, v{b+k}, v{48+rr}")
            a(f"v_mul_f32 v{d}, v{b}, v{b}")
            for k in range(1, 8): a(f"v_fmac_f32 v{d}, v{b+k}, v{b+k}")
        xreduce64(a, [52, 53], [50, 51])
        a("v_mov_b32 v54, 0x3727c5ac")
        a("v_fmac_f32 v54, 0x3b000000, v52")
        a("v_mov_b32 v55, 0x3727c5ac")
        a("v_fmac_f32 v55, 0x3b000000, v53")
        a("v_rsq_f32 v54, v54")
        a("v_rsq_f32 v55, v55")
        a("v_cmp_eq_u32 vcc, 0, v0")
        a("v_cndmask_b32 v56, v49, v48, vcc")
        a("v_mov_b32 v57, s39")
        a("v_cndmask_b32 v58, v55, v54, vcc")
        a("v_mov_b32 v59, s39")
        a("s_lshl_b32 s72, s80, 4")
        a(f"s_add_u32 s72, s72, {STATS_OFF}")
        a("s_mov_b64 exec, 3")
        vm.issue("buffer_store_dwordx4 v[56:59], v14, s[28:31], s72 offen sc1", "pub")
        a("s_mov_b64 exec, -1")
        a("v_lshrrev_b32 v3, 5, v0")
        a("v_lshrrev_b32 v6, 2, v0")
        a("v_and_b32 v6, 3, v6")
        a("v_lshl_add_u32 v6, v3, 3, v6")
        a("v_lshlrev_b32 v6, 6, v6")
        a("v_lshrrev_b32 v7, 4, v0")
        a("v_and_b32 v7, 1, v7")
        a("v_lshl_add_u32 v6, v7, 5, v6")
        a("v_and_b32 v7, 3, v0")
        a("v_lshl_add_u32 v6, v7, 3, v6")
        a("s_lshl_b32 s73, s70, 11")
        a(f"s_add_u32 s73, s73, {CS_STAGE}")
        a("v_add_u32 v6, s73, v6")
        for tt in range(2):
            for st in range(2):
                for z in range(2):
                    r = 64 + 8 * tt + 4 * st + 2 * z
                    a(f"ds_read_b64_tr_b16 v[{r}:{r+1}], v6 offset:{tt*8192 + st*1024 + z*256}")
        for k in range(4): a(f"v_mov_b32 v{60+k}, 0x3f803f80")
        a("s_waitcnt lgkmcnt(0)")
        for tt in range(2):
            d = 80 + 16 * tt
            a(f"v_mfma_f32_32x32x16_bf16 v[{d}:{d+15}], v[60:63], v[{64+8*tt}:{67+8*tt}], 0")
            a(f"v_mfma_f32_32x32x16_bf16 v[{d}:{d+15}], v[60:63], v[{68+8*tt}:{71+8*tt}], v[{d}:{d+15}]")
        a("s_lshl_b32 s72, s37, 4")
        a("s_add_u32 s72, s72, s36")
        a("s_mul_i32 s72, s72, 1792")
        a("s_lshl_b32 s73, s70, 8")
        a("s_add_u32 s72, s72, s73")
        a(f"s_add_u32 s72, s72, {CSUM_OFF}")
        a("v_lshlrev_b32 v15, 3, v0")
        a("v_mov_b32 v81, s39")
        a("v_mov_b32 v97, s39")
        a("s_mov_b32 exec_hi, 0")
        vm.issue("buffer_store_dwordx2 v[80:81], v15, s[28:31], s72 offen sc1", "pub")
        a(f"s_cmp_ge_u32 s70, {nt-4}")
        a(f"s_cselect_b32 s72, {DUMMY_OFF}, s72")
        vm.issue("buffer_store_dwordx2 v[96:97], v15, s[28:31], s72 offen offset:1024 sc1", "pub")
        a("s_mov_b64 exec, -1")
        GS = 3 if typ == "A" else 4
        job = None
        if typ == "A":
            jobasm = Asm(); jobasm.hist = []
            helper_k_job(jobasm)
            job = jobasm.lines
        def gather_issue():
            lab = (typ)
            a("s_cmp_ge_u32 s70, 2")
            a(f"s_cbranch_scc1 L_g_rows_{lab}")
            a("s_lshl_b32 s72, s70, 10")
            a("v_add_u32 v15, s72, v14")
            a("s_mul_i32 s72, s37, 28672")
            a(f"s_add_u32 s72, s72, {CSUM_OFF}")
            for k in range(16):
                a(f"buffer_load_dwordx4 v[{128+4*k}:{131+4*k}], v15, s[28:31], s72 offen sc1")
                if k < 15: a("s_add_u32 s72, s72, 1792")
            a(f"s_branch L_g_done_{lab}")
            a.place(f"L_g_rows_{lab}")
            a("s_lshl_b32 s72, s36, 11")
            a("s_sub_u32 s73, s70, 2")
            a("s_lshl_b32 s73, s73, 10")
            a("s_add_u32 s72, s72, s73")
            a(f"s_add_u32 s72, s72, {STATS_OFF}")
            for k in range(16):
                a(f"buffer_load_dwordx4 v[{128+4*k}:{131+4*k}], v14, s[28:31], s72 offen sc1")
            a.place(f"L_g_done_{lab}")
            for k in range(16): vm.append("gather")
        def gather_check():
            lab = typ
            a("s_mov_b32 s84, 0")
            a.place(f"L_gc_{lab}")
            a.forget()
            a("v_mov_b32 v16, s39")
            a("v_xor_b32 v17, v129, v16")
            for k in range(16):
                if k: a(f"v_xor_b32 v18, v{129+4*k}, v16\nv_or_b32 v17, v17, v18")
                a(f"v_xor_b32 v18, v{131+4*k}, v16\nv_or_b32 v17, v17, v18")
            a("s_lshl_b32 s72, s70, 6")
            a("v_add_u32 v18, s72, v0")
            a(f"s_movk_i32 s73, {nt*16}")
            a("s_cmp_ge_u32 s70, 2")
            a("s_cselect_b32 s73, 0x1000, s73")
            a("v_cmp_gt_u32 vcc, s73, v18")
            a("v_cndmask_b32 v17, 0, v17, vcc")
            a("v_cmp_ne_u32 vcc, 0, v17")
            a("s_cmp_eq_u64 vcc, 0")
            a(f"s_cbranch_scc1 L_gok_{lab}")
            a("s_add_u32 s84, s84, 1")
            a("s_cmp_gt_u32 s84, 20000")
            a(f"s_cbranch_scc1 L_gok_{lab}")
            a("s_sleep 2")
            gl = lab + "r"
            a("s_cmp_ge_u32 s70, 2")
            a(f"s_cbranch_scc1 L_g_rows_{gl}")
            a("s_mul_i32 s72, s37, 28672")
            a(f"s_add_u32 s72, s72, {CSUM_OFF}")
            for k in range(16):
                a(f"buffer_load_dwordx4 v[{128+4*k}:{131+4*k}], v15, s[28:31], s72 offen sc1")
                if k < 15: a("s_add_u32 s72, s72, 1792")
            a(f"s_branch L_g_done_{gl}")
            a.place(f"L_g_rows_{gl}")
            a("s_lshl_b32 s72, s36, 11")
            a("s_sub_u32 s73, s70, 2")
            a("s_lshl_b32 s73, s73, 10")
            a("s_add_u32 s72, s72, s73")
            a(f"s_add_u32 s72, s72, {STATS_OFF}")
            a(f"buffer_load_dwordx4 v[128:131], v14, s[28:31], s72 offen sc1")
            a("s_waitcnt vmcnt(0)")
            for k in range(1, 16):
                a(f"v_mov_b32 v{129+4*k}, v129\nv_mov_b32 v{131+4*k}, v131")
            a.place(f"L_g_done_{gl}")
            a("s_waitcnt vmcnt(0)")
            a(f"s_branch L_gc_{lab}")
            a.place(f"L_gok_{lab}")
            a.forget()
            a("s_cmp_ge_u32 s70, 2")
            a(f"s_cbranch_scc1 L_gp_rows_{lab}")
            for k in range(1, 16):
                a(f"v_add_f32 v128, v128, v{128+4*k}")
                a(f"v_add_f32 v130, v130, v{130+4*k}")
            for src, d in ((128, 132), (130, 134)):
                a(f"v_cvt_pk_bf16_f32 v{d}, v{src}, v{src}")
                a(f"v_and_b32 v16, 0xffff0000, v{d}")
                a(f"v_sub_f32 v16, v{src}, v16")
                a(f"v_cvt_pk_bf16_f32 v{d+1}, v16, v16")
            a(f"v_add_u32 v16, {COLP}, v15")
            a(f"v_cmp_gt_u32 vcc, {nt*16}, v18") if nt*16 <= 64 else (a(f"s_movk_i32 s73, {nt*16}"), a("v_cmp_gt_u32 vcc, s73, v18"))
            a("s_and_saveexec_b64 s[86:87], vcc")
            a("ds_write_b128 v16, v[132:135]")
            a("s_mov_b64 exec, -1")
            a(f"s_branch L_gp_done_{lab}")
            a.place(f"L_gp_rows_{lab}")
            a.forget()
            a("v_sub_f32 v128, 0, v128")
            a("v_cvt_pk_bf16_f32 v132, v128, v128")
            a("v_and_b32 v16, 0xffff0000, v132")
            a("v_sub_f32 v16, v128, v16")
            a("v_cvt_pk_bf16_f32 v132, v128, v16")
            a("v_mov_b32 v133, v132")
            a("s_sub_u32 s73, s70, 2")
            a("s_lshl_b32 s72, s73, 9")
            a(f"s_add_u32 s72, s72, {ROWP}")
            a("v_lshlrev_b32 v16, 3, v0")
            a("v_add_u32 v16, s72, v16")
            a("ds_write_b64 v16, v[132:133]")
            a("s_lshl_b32 s72, s73, 8")
            a(f"s_add_u32 s72, s72, {RSTD}")
            a("v_lshlrev_b32 v16, 2, v0")
            a("v_add_u32 v16, s72, v16")
            a("ds_write_b32 v16, v130")
            a.place(f"L_gp_done_{lab}")
            a.forget()
            a("s_waitcnt lgkmcnt(0)")
        nchunk = 6
        for s in range(1, nst + 1):
            if s < nst: vm.wait(f"st{s}")
            a("s_barrier")
            if s == GS: gather_issue()
            if s + 2 < nst: issue(s + 2)
            if s == GS + 2:
                vm.wait("gather")
                gather_check()
            if typ == "A" and 9 <= s < 9 + nchunk:
                k = s - 9
                n = len(job)
                lo, hi = k * n // nchunk, (k + 1) * n // nchunk
                a.settle()
                a.lines.extend(job[lo:hi]); a.forget()
                a("s_nop 11") if False else None
                a.lines.append("    s_nop 11")
        if typ == "A":
            a("s_lshl_b32 s72, s40, 2")
            a("s_add_u32 s72, s72, s70")
            a("s_lshl_b32 s72, s72, 12")
            a(f"s_add_u32 s72, s72, {KV_OFF}")
            a("v_lshlrev_b32 v15, 2, v0")
            a("s_mov_b32 exec_lo, 0x0011ffff")
            a("s_mov_b32 exec_hi, 0x0011ffff")
            for r in range(16):
                a(f"buffer_atomic_add_f32 v{192+r}, v15, s[28:31], s72 offen offset:{r*256}")
            a("s_mov_b64 exec, -1")
            stamp(a, 5)
        a("s_branch L_bump")
    a.place("L_bump"); a.forget()
    a("s_cmp_lg_u32 s38, 4")
    a("s_cbranch_scc1 L_end_k1")
    a("s_load_dwordx2 s[68:69], s[0:1], 64")
    a("s_waitcnt lgkmcnt(0)")
    srd(a, 84, 68, 256)
    a("v_mov_b32 v5, 1")
    a("v_mov_b32 v6, 0")
    a("s_mov_b64 exec, 1")
    a("buffer_atomic_add v5, v6, s[84:87], 0 offen sc0")
    a("s_waitcnt vmcnt(0)")
    a("v_readfirstlane_b32 s72, v5")
    a("s_cmp_lg_u32 s72, 255")
    a("s_cbranch_scc1 L_end_k1")
    a("v_mov_b32 v5, s39")
    a(f"v_mov_b32 v6, {EPOCH_OFF}")
    a("buffer_store_dword v5, v6, s[28:31], 0 offen sc1")
    a.place("L_end_k1")
    a("s_endpgm")
    return a

def helper_k_job(a):
    a("v_lshrrev_b32 v3, 5, v0")
    a("v_lshrrev_b32 v4, 2, v0")
    a("v_and_b32 v4, 3, v4")
    a("v_and_b32 v5, 3, v0")
    a("v_lshl_add_u32 v6, v3, 2, v4")
    a("v_lshlrev_b32 v6, 5, v6")
    a("v_lshl_add_u32 v6, v5, 3, v6")
    a("s_lshl_b32 s72, s70, 10")
    a(f"s_add_u32 s72, s72, {WPHI}")
    a("v_add_u32 v6, s72, v6")
    WF = 20
    a(f"ds_read_b64_tr_b16 v[{WF}:{WF+1}], v6")
    a(f"ds_read_b64_tr_b16 v[{WF+2}:{WF+3}], v6 offset:256")
    a("s_lshl_b32 s72, s70, 10")
    a(f"s_add_u32 s72, s72, {KFR}")
    a("v_add_u32 v6, s72, v14")
    KF = 24
    for mt in range(4):
        a(f"ds_read_b128 v[{KF+4*mt}:{KF+4*mt+3}], v6 offset:{mt*4096}")
    a("v_and_b32 v2, 31, v0")
    a("v_lshlrev_b32 v6, 2, v2")
    a(f"v_add_u32 v6, {RSTD}, v6")
    for mt in range(4):
        a(f"ds_read_b32 v{40+mt}, v6 offset:{mt*128}")
    a(f"s_mul_i32 s72, s70, 2304")
    a(f"s_add_u32 s72, s72, {PHT}")
    a(f"v_mul_u32_u24 v6, {PRS}, v2")
    a("v_lshl_add_u32 v6, v3, 3, v6")
    a("v_add_u32 v44, s72, v6")
    a("v_lshl_add_u32 v6, v3, 3, v4")
    a(f"v_mul_u32_u24 v7, {PRS}, v6")
    a("v_lshrrev_b32 v16, 4, v0")
    a("v_and_b32 v16, 1, v16")
    a("v_lshl_add_u32 v7, v16, 5, v7")
    a("v_lshl_add_u32 v7, v5, 3, v7")
    a("v_add_u32 v45, s72, v7")
    a(f"v_mul_u32_u24 v7, {VRS}, v6")
    a("v_lshl_add_u32 v7, v5, 3, v7")
    a("s_lshl_b32 s72, s70, 5")
    a(f"s_add_u32 s72, s72, {VT}")
    a("v_add_u32 v46, s72, v7")
    a("v_cmp_eq_u32 vcc, 1, v16")
    a(f"s_mov_b32 s73, {LOG2E}")
    a("v_mov_b32 v47, 0x3f803f80")
    a("s_waitcnt lgkmcnt(0)")
    for mt in range(4):
        a(f"v_mul_f32 v{40+mt}, s73, v{40+mt}")
    PD = 64
    for mt in range(4):
        d = PD + 16 * mt
        a(f"v_mfma_f32_32x32x16_bf16 v[{d}:{d+15}], v[{WF}:{WF+3}], v[{KF+4*mt}:{KF+4*mt+3}], 0")
    for mt in range(4):
        d = PD + 16 * mt
        softmax_unit(a, d, 40 + mt, 128, 152)
        for q in range(4):
            a(f"ds_write_b64 v44, v[{152+2*q}:{153+2*q}] offset:{16*q}")
        for t in range(2):
            for z in range(2):
                a(f"ds_read_b64_tr_b16 v[{160+4*t+2*z}:{161+4*t+2*z}], v45 offset:{(16*t+4*z)*PRS}")
                a(f"ds_read_b64_tr_b16 v[{168+4*t+2*z}:{169+4*t+2*z}], v46 offset:{(32*mt+16*t+4*z)*VRS}")
        a("s_waitcnt lgkmcnt(0)")
        for k in range(8):
            a(f"v_cndmask_b32 v{168+k}, v{168+k}, v47, vcc")
        for t in range(2):
            c = "0" if (mt == 0 and t == 0) else "v[192:207]"
            a(f"v_mfma_f32_32x32x16_bf16 v[192:207], v[{160+4*t}:{163+4*t}], v[{168+4*t}:{171+4*t}], {c}")

def gen_k2():
    a = Asm(); a.kname = "k2"
    prologue(a)
    a("s_lshl_b32 s70, s2, 3")
    a("s_add_u32 s70, s70, s38")
    a("s_lshr_b32 s71, s70, 5")
    a("s_and_b32 s72, s70, 31")
    a("v_lshlrev_b32 v2, 4, v0")
    a("v_lshlrev_b32 v3, 2, v0")
    a("s_lshl_b32 s73, s70, 11")
    a(f"s_add_u32 s73, s73, {PHIQ_OFF}")
    a("buffer_load_dwordx4 v[8:11], v2, s[28:31], s73 offen")
    a("buffer_load_dwordx4 v[12:15], v2, s[28:31], s73 offen offset:1024")
    a("s_lshl_b32 s73, s72, 12")
    a(f"s_add_u32 s73, s73, {KV_OFF}")
    for r in range(16):
        a(f"buffer_load_dword v{16+r}, v3, s[28:31], s73 offen offset:{r*256}")
    a("v_and_b32 v4, 31, v0")
    a("v_lshlrev_b32 v4, 4, v4")
    a("s_lshl_b32 s73, s71, 9")
    a(f"s_add_u32 s73, s73, {STATS_OFF}")
    a("buffer_load_dword v5, v4, s[28:31], s73 offen offset:8")
    a("s_waitcnt vmcnt(0)")
    for p in range(8): a(f"v_cvt_pk_bf16_f32 v{32+p}, v{16+2*p}, v{17+2*p}")
    a("v_mfma_f32_32x32x16_bf16 v[48:63], v[32:35], v[8:11], 0")
    a("v_mfma_f32_32x32x16_bf16 v[48:63], v[36:39], v[12:15], v[48:63]")
    a("v_add_f32 v6, 0x358637bd, v56")
    a("v_mul_f32 v6, v6, v5")
    a("v_rcp_f32 v6, v6")
    for k in range(8): a(f"v_mul_f32 v{48+k}, v{48+k}, v6")
    for p in range(4): a(f"v_cvt_pk_bf16_f32 v{40+p}, v{48+2*p}, v{49+2*p}")
    a("s_lshr_b32 s73, s72, 2")
    a("s_mul_i32 s73, s73, 18")
    a("s_and_b32 s74, s72, 3")
    a("s_add_u32 s73, s73, s74")
    a("s_add_u32 s73, s73, 14")
    a("s_mul_i32 s74, s71, 144")
    a("s_add_u32 s73, s73, s74")
    a("s_lshl_b32 s73, s73, 10")
    a("buffer_store_dwordx4 v[40:43], v2, s[28:31], s73 offen")
    a.place("L_end_k2")
    a("s_endpgm")
    return a

SLAB = 17408
def gen_k3(depth=9):
    a = Asm(); a.kname = "k3"
    prologue(a)
    vm = VM(a)
    if STAMPS: stamp(a, 8, spair=60)
    a("s_and_b32 s70, s42, 3")
    a("s_lshl_b32 s71, s3, 2")
    a("s_add_u32 s70, s70, s71")
    a("s_lshr_b32 s71, s42, 2")
    a("v_lshlrev_b32 v2, 4, v0")
    a("s_mul_i32 s72, s70, 288")
    a("s_mul_i32 s73, s38, 18")
    a("s_add_u32 s72, s72, s73")
    a("s_lshl_b32 s72, s72, 10")
    a(f"s_add_u32 s73, s72, {144*1024}")
    a("v_lshrrev_b32 v3, 3, v0")
    a("v_lshrrev_b32 v4, 4, v0")
    a("v_and_b32 v4, 1, v4")
    a("v_lshlrev_b32 v4, 2, v4")
    a("v_and_b32 v5, 7, v0")
    a("v_xor_b32 v4, v4, v5")
    a("v_lshlrev_b32 v3, 10, v3")
    a("v_lshl_add_u32 v3, v4, 4, v3")
    a("s_lshl_b32 s74, s71, 7")
    a("v_add_u32 v3, s74, v3")
    a("v_add_u32 v4, 7168, v3")
    a(f"s_mul_i32 s74, s38, {224*1024}")
    a(f"s_lshl_b32 s75, s38, 16")
    a(f"s_mul_i32 s76, s38, {depth*2048}")
    a("v_lshrrev_b32 v5, 5, v0")
    a("v_lshrrev_b32 v6, 2, v0")
    a("v_and_b32 v6, 3, v6")
    a("v_lshl_add_u32 v7, v5, 2, v6")
    a("v_lshlrev_b32 v7, 7, v7")
    a("v_lshrrev_b32 v6, 1, v6")
    a("v_lshl_add_u32 v7, v6, 6, v7")
    a("v_lshrrev_b32 v6, 4, v0")
    a("v_and_b32 v6, 1, v6")
    a("v_lshl_add_u32 v7, v6, 5, v7")
    a("v_and_b32 v6, 3, v0")
    a("v_lshl_add_u32 v7, v6, 3, v7")
    a("v_add_u32 v8, s76, v7")
    a("v_xor_b32 v9, 64, v8")
    AR = 128
    BF = 16
    ACC = 64
    def issue(s):
        slot = s % depth
        a(f"s_add_u32 m0, s76, {slot*2048}")
        if s < 14:
            a(f"s_add_u32 s77, s74, {s*16*1024}")
            W = "s[16:19]"
        else:
            a(f"s_add_u32 s77, s75, {(s-14)*16*1024}")
            W = "s[20:23]"
        vm.issue(f"buffer_load_dwordx4 v3, {W}, s77 offen lds", f"s{s}")
        vm.issue(f"buffer_load_dwordx4 v4, {W}, s77 offen offset:1024 lds", f"s{s}")
        r = AR + 8 * slot
        a(f"s_add_u32 s78, s72, {s*1024}")
        a(f"s_add_u32 s79, s73, {s*1024}")
        vm.issue(f"buffer_load_dwordx4 v[{r}:{r+3}], v2, s[28:31], s78 offen sc1", f"s{s}")
        vm.issue(f"buffer_load_dwordx4 v[{r+4}:{r+7}], v2, s[28:31], s79 offen sc1", f"s{s}")
    for s in range(depth): issue(s)
    a("s_lshl_b32 s80, s38, 3")
    a("v_lshrrev_b32 v10, 3, v0")
    a("v_add_u32 v10, s80, v10")
    a("v_and_b32 v11, 7, v0")
    a("v_lshlrev_b32 v12, 10, v10")
    a("v_lshl_add_u32 v12, v11, 4, v12")
    a("s_lshl_b32 s80, s70, 16")
    a("s_lshl_b32 s81, s71, 7")
    a("s_add_u32 s80, s80, s81")
    vm.issue("buffer_load_dwordx4 v[208:211], v12, s[4:7], s80 offen", "res")
    a("v_lshlrev_b32 v13, 4, v10")
    a("s_lshl_b32 s81, s70, 10")
    a(f"s_add_u32 s81, s81, {STATS_OFF}")
    vm.issue("buffer_load_dword v212, v13, s[28:31], s81 offen offset:8 sc1", "res")
    for r in range(64): a(f"v_mov_b32 v{ACC+r}, 0")
    def breads(s):
        slot = s % depth; b = BF + 8 * (s % 2)
        for t in range(2):
            for z in range(2):
                a(f"ds_read_b64_tr_b16 v[{b+4*t+2*z}:{b+4*t+2*z+1}], v{8+t} offset:{slot*2048 + z*1024}")
    vm.wait("s0")
    breads(0)
    for s in range(18):
        slot = s % depth; b = BF + 8 * (s % 2); r = AR + 8 * slot
        if s + 1 < 18:
            vm.wait(f"s{s+1}")
            breads(s + 1)
            a("s_waitcnt lgkmcnt(4)")
        else:
            a("s_waitcnt lgkmcnt(0)")
        for t in range(2):
            for x in range(2):
                acc = ACC + 16 * (2 * t + x)
                a(f"v_mfma_f32_32x32x16_bf16 v[{acc}:{acc+15}], v[{b+4*t}:{b+4*t+3}], v[{r+4*x}:{r+4*x+3}], v[{acc}:{acc+15}]")
        if s + depth < 18: issue(s + depth)
    stamp(a, 9)
    a("s_barrier")
    a("v_and_b32 v5, 31, v0")
    a("v_mul_u32_u24 v5, 272, v5")
    a("v_lshrrev_b32 v6, 5, v0")
    a("v_lshl_add_u32 v5, v6, 4, v5")
    a(f"s_mul_i32 s77, s38, {SLAB}")
    a("v_add_u32 v5, s77, v5")
    for t in range(2):
        for x in range(2):
            acc = ACC + 16 * (2 * t + x)
            for q in range(4):
                a(f"ds_write_b128 v5, v[{acc+4*q}:{acc+4*q+3}] offset:{x*32*272 + t*128 + q*32}")
    a("s_waitcnt lgkmcnt(0)")
    a("s_barrier")
    a("v_mul_u32_u24 v5, 272, v10")
    a("v_lshl_add_u32 v5, v11, 5, v5")
    a(f"v_add_u32 v6, {4*SLAB}, v5")
    for w in range(8):
        va = 5 if w < 4 else 6
        for hf in range(2):
            r = 64 + 8 * w + 4 * hf
            a(f"ds_read_b128 v[{r}:{r+3}], v{va} offset:{(w%4)*SLAB + 16*hf}")
    for w in range(1, 8):
        a(f"s_waitcnt lgkmcnt({max(0, 14 - 2*w)})")
        for k in range(8): a(f"v_add_f32 v{64+k}, v{64+k}, v{64+8*w+k}")
    vm.wait("res")
    for k in range(4):
        a(f"v_lshlrev_b32 v{80+2*k}, 16, v{208+k}")
        a(f"v_and_b32 v{81+2*k}, 0xffff0000, v{208+k}")
    for k in range(8): a(f"v_fmac_f32 v{80+k}, v{64+k}, v212")
    for k in range(4): a(f"v_cvt_pk_bf16_f32 v{72+k}, v{80+2*k}, v{81+2*k}")
    a("buffer_store_dwordx4 v[72:75], v12, s[24:27], s80 offen")
    stamp(a, 10)
    a.place("L_end_k3")
    a("s_endpgm")
    return a

def build(stamps=False):
    global STAMPS
    STAMPS = stamps
    k1 = gen_k1(); k2 = gen_k2(); k3 = gen_k3()
    return kernel_wrap([("k1_kernel", k1.text(), 256, 96), ("k2_kernel", k2.text(), 64, 96), ("k3_kernel", k3.text(), 256, 96)],
                       [("k1_kernel", 256, 512, 163840), ("k2_kernel", 256, 512, 0), ("k3_kernel", 256, 512, 9 * 2048 * 8)])

if __name__ == "__main__":
    open("base.s", "w").write(build(False))
    open("base_st.s", "w").write(build(True))
```
